```python
import torch

def _softmax(x, axis=-1):
    return torch.softmax(x, dim=axis)

def _gelu(x):
    return torch.nn.functional.gelu(x, approximate='tanh')

def _silu(x):
    return torch.nn.functional.silu(x)

def _sigmoid(x):
    return torch.sigmoid(x)

def _layernorm(x, axis=-1, eps=1e-05):
    m = x.mean(dim=axis, keepdim=True)
    v = x.var(dim=axis, keepdim=True, unbiased=False)
    return (x - m) / torch.sqrt(v + eps)

def _scatter_add(tgt, idx, src, axis=0):
    return tgt.clone().index_add_(axis, idx, src)

def _segment_sum(src, seg, n):
    out = torch.zeros((n,) + src.shape[1:], dtype=src.dtype)
    return out.index_add_(0, seg, src)

def _pad(x, pw):
    flat = tuple((v for pair in reversed(pw) for v in pair))
    return torch.nn.functional.pad(x, flat)
kernel_name = 'gated_mix__grouped_kv_mqa__memory_aug_recurrent_mem_tr__prompt'

def setup_inputs():

    _w = lambda a: (lambda t: t.to(torch.bfloat16) if t.is_floating_point() else t)(torch.as_tensor(a))

    def _A_setup():
        B, S, D, H = (1, 2048, 640, 32)
        Dh = D // H
        return {'x': _w((lambda *s: torch.randn(*s, dtype=torch.bfloat16) * 0.05)(B, S, D)), 'wq': _w((lambda *s: torch.randn(*s, dtype=torch.bfloat16) * 0.8)(D, H * Dh)), 'wk': _w((lambda *s: torch.randn(*s, dtype=torch.bfloat16) * 0.8)(D, Dh)), 'wv': _w((lambda *s: torch.randn(*s, dtype=torch.bfloat16) * 0.05)(D, Dh)), 'wo': _w((lambda *s: torch.randn(*s, dtype=torch.bfloat16) * 0.05)(H * Dh, D))}
    _A_in = _A_setup()

    def _B_setup():
        B, S, Dm = (1, 2048, 640)
        H, Dh = (32, 128)
        M, seg = (8, 32)
        seg = min(seg, S)
        S = S // seg * seg
        return {'x': _w((lambda *s: torch.randn(*s, dtype=torch.bfloat16) * 0.05)(B, S, Dm)), 'mem0': _w((lambda *s: torch.randn(*s, dtype=torch.bfloat16) * 0.4)(B, M, Dm)), 'Wq': _w((lambda *s: torch.randn(*s, dtype=torch.bfloat16) * 6.4)(Dm, H, Dh) * Dm ** (-0.5)), 'Wk': _w((lambda *s: torch.randn(*s, dtype=torch.bfloat16) * 6.4)(Dm, H, Dh) * Dm ** (-0.5)), 'Wv': _w((lambda *s: torch.randn(*s, dtype=torch.bfloat16) * 0.4)(Dm, H, Dh) * Dm ** (-0.5)), 'Wo': _w((lambda *s: torch.randn(*s, dtype=torch.bfloat16) * 0.4)(H, Dh, Dm) * (H * Dh) ** (-0.5)), 'seg_len': seg}
    _B_in = _B_setup()
    return {'A_x': _A_in['x'], 'A_wq': _A_in['wq'], 'A_wk': _A_in['wk'], 'A_wv': _A_in['wv'], 'A_wo': _A_in['wo'], 'B_x': _B_in['x'], 'B_mem0': _B_in['mem0'], 'B_Wq': _B_in['Wq'], 'B_Wk': _B_in['Wk'], 'B_Wv': _B_in['Wv'], 'B_Wo': _B_in['Wo'], 'B_seg_len': _B_in['seg_len'], 'gate_w': _w((lambda *s: torch.randn(*s, dtype=torch.bfloat16) * 0.05)(640) * 16.0)}

def reference(A_x, A_wq, A_wk, A_wv, A_wo, B_x, B_mem0, B_Wq, B_Wk, B_Wv, B_Wo, B_seg_len, gate_w):

    def _A_ref(x, wq, wk, wv, wo):
        B, S, D = x.shape
        H = 32
        Dh = D // H
        q = (lambda x, *d: x.permute(*d))((x @ wq).reshape(B, S, H, Dh), 0, 2, 1, 3)
        k = x @ wk
        v = x @ wv
        scores = torch.einsum('bhqd,bkd->bhqk', q, k) * Dh ** (-0.5)
        p = _softmax(scores, axis=-1)
        o = torch.einsum('bhqk,bkd->bhqd', p, v)
        return (lambda x, *d: x.permute(*d))(o, 0, 2, 1, 3).reshape(B, S, H * Dh) @ wo

    def _B_ref(x, mem0, Wq, Wk, Wv, Wo, seg_len):
        B, S, Dm = x.shape
        H, Dh = (Wq.shape[1], Wq.shape[2])
        M = mem0.shape[1]
        scale = Dh ** (-0.5)
        n_seg = S // seg_len
        L = M + seg_len
        idx = torch.arange(L)
        mask = (idx[:, None] < M) | (idx[:, None] >= idx[None, :])
        mem = mem0
        outs = []
        for s in range(n_seg):
            xs = x[:, s * seg_len:(s + 1) * seg_len, :].clone()
            h = torch.concatenate([mem, xs], axis=1)
            q = torch.einsum('btd,dhe->bhte', h, Wq)
            k = torch.einsum('btd,dhe->bhte', h, Wk)
            v = torch.einsum('btd,dhe->bhte', h, Wv)
            scores = torch.einsum('bhqe,bhke->bhqk', q, k) * scale
            scores = torch.where(mask[None, None], scores, -1000000000.0)
            p = _softmax(scores, axis=-1)
            o = torch.einsum('bhqk,bhke->bhqe', p, v)
            o = torch.einsum('bhte,hed->btd', o, Wo)
            mem = o[:, :M, :].clone()
            outs.append(o[:, M:, :])
        return torch.concatenate(outs, axis=1)
    x = A_x
    g = _sigmoid((x * gate_w).sum(-1, keepdims=True))
    a = _A_ref(x, A_wq, A_wk, A_wv, A_wo)
    b = _B_ref(x, B_mem0, B_Wq, B_Wk, B_Wv, B_Wo, B_seg_len)
    return g * a + (1 - g) * b
```

```python
from common import *
O=[8+8*i for i in range(7)]
X=os.environ.get('X','')
def RU(r,o=0,n=8): return A(16*r+o,n) if r<16 else V(64+16*(r-16)+o,n)
CL={}; r=0
for j in range(10):
    CL['q',j]=('S',0) if j==0 else None; CL['k',j]=('S',1) if j==0 else ('L',j//2) if j%2 else None
    CL['v',j]=None; CL['o',j]=None if j%2 else {0:('L',5),2:('S',2),4:('L',6),6:('L',7),8:('L',8)}[j]
for k in CL:
    if CL[k] is None: CL[k]=('R',r); r+=1
assert r==28
def p1wait(e,v):
    d=e.new(); l=e.new()
    e.i(f's_add_u32 s82, s72, 2\ns_cmp_ge_u32 s80, s82\ns_cbranch_scc1 {d}\ns_lshl_b32 s89, s69, 4'); e.lab(l)
    e.i(f'buffer_load_dwordx4 {V(v,4)}, off, {WS}, s89 sc1\ns_waitcnt vmcnt(0)'); e.nv-=1
    e.i(f'v_min_u32 v{v}, v{v}, v{v+1}\nv_min3_u32 v{v}, v{v}, v{v+2}, v{v+3}\nv_readfirstlane_b32 s80, v{v}\ns_lshl_b32 s80, s80, 2\ns_cmp_ge_u32 s80, 64\ns_cselect_b32 s80, 99, s80\ns_cmp_ge_u32 s80, s82')
    spin(e,l,'s_cbranch_scc1'); e.lab(d)
def chain(e):
    for b,n in ((12,'Wq'),(16,'Wk'),(20,'Wv'),(24,'Wo'),(32,'mem0')): srd(e,b,n)
    e.i(f'''s_mul_i32 s83, s3, 36864
s_add_u32 s83, s83, 16384
s_lshl_b32 s84, s3, 12
s_lshl_b32 s85, s69, 2
s_add_u32 s85, s85, s3
s_mul_i32 s87, s85, 12288
s_add_u32 s87, s87, {STREAM}
s_lshl_b32 s85, s85, 6
s_mul_i32 s86, s69, 163840
s_mul_i32 s82, s3, 320
s_add_u32 s86, s86, s82
s_mov_b32 s90, 0x00ff00ff
s_mov_b32 s91, 0x00ff00ff
s_mov_b32 s92, 0xff00ff00
s_mov_b32 s93, 0xff00ff00
s_mov_b32 s94, 0x3e0293ee
s_mov_b32 s95, 0x3e0293ee''')
    lane(e,32)
    e.i('''v_lshlrev_b32 v0, 4, v32
v_add_u32 v1, s83, v0
v_lshrrev_b32 v33, 2, v32
v_and_b32 v34, 3, v32
v_lshlrev_b32 v12, 13, v33
v_lshl_add_u32 v12, v34, 4, v12
v_mul_u32_u24 v13, 1280, v33
v_lshl_add_u32 v13, v34, 4, v13
v_bfe_u32 v35, v32, 2, 1
v_bfe_u32 v36, v32, 3, 1
v_bfe_u32 v37, v32, 4, 1
v_lshrrev_b32 v38, 5, v32
v_lshlrev_b32 v34, 3, v34
v_lshl_add_u32 v34, v35, 6, v34
v_lshl_add_u32 v8, v38, 10, v34
v_lshl_add_u32 v8, v37, 8, v8
v_lshl_add_u32 v8, v36, 9, v8
v_lshl_add_u32 v10, v37, 10, v34
v_lshl_add_u32 v10, v38, 8, v10
v_lshl_add_u32 v10, v36, 5, v10
v_add_u32 v9, s84, v8
v_add_u32 v8, s83, v8
v_add_u32 v11, s84, v10
v_add_u32 v10, s83, v10
v_mov_b32 v2, 0x44444444
s_mov_b64 exec, s[92:93]
v_mov_b32 v2, 0xeeeeeeee
s_mov_b64 exec, -1
v_and_b32 v33, 7, v32
v_lshlrev_b32 v34, 4, v33
v_lshrrev_b32 v39, 4, v32
v_lshl_add_u32 v6, v39, 7, v34
v_lshl_add_u32 v7, v37, 3, v34
v_lshl_add_u32 v7, v36, 12, v7
v_lshl_add_u32 v7, v38, 13, v7
v_lshl_add_u32 v14, v39, 2, v34
v_and_b32 v34, 1, v32
v_lshlrev_b32 v34, 4, v34
v_lshlrev_b32 v34, v34, 0x3f80
v_lshrrev_b32 v33, 1, v33
v_lshlrev_b32 v37, 1, v37
v_cmp_eq_u32 vcc, v33, v37
v_cndmask_b32 v4, 0, v34, vcc
v_add_u32 v37, 1, v37
v_cmp_eq_u32 vcc, v33, v37
v_cndmask_b32 v5, 0, v34, vcc'''.replace('v_lshlrev_b32 v34, v34, 0x3f80','v_mov_b32 v35, 0x3f80\nv_lshlrev_b32 v34, v34, v35'))
    ks=[k for k in CL if CL[k][0]!='L']; ks=ks[:30]+sorted([k for k in CL if CL[k][0]=='L'],key=lambda k:CL[k][1])+ks[30:]
    un=[]
    for m,j in ks:
        c,n=CL[m,j]
        dst=(lambda o,n=n:RU(n,o,2)) if c=='R' else (lambda o:V(16+o,2))
        if m=='o': un.append((W3,'v13','s86',(j//2)*64+(j%2)*81920,20480,4,lambda sl,dst=dst:[(dst(8*t+2*z),'v11' if sl==9 else 'v10',(sl%9)*4096+2048*t+(0,2,8,10)[z]*64) for t in range(2) for z in range(4)]))
        else: un.append(({'q':W0,'k':W1,'v':W2}[m],'v12','s85',j*524288,131072,4,lambda sl,dst=dst:[(dst(8*t+2*z),'v9' if sl==9 else 'v8',(sl%9)*4096+32*t+(0,2,32,34)[z]*64) for t in range(2) for z in range(4)]))
    def setred():
        e.i(f'''s_lshl_b32 s76, s69, 1
s_add_u32 s76, s76, s3
s_add_u32 s82, s69, 64
s_mul_i32 s81, s82, s3
s_cmp_ge_u32 s3, 2
s_cselect_b32 s76, s82, s76
s_cmp_lt_u32 s81, 160
s_cselect_b32 s81, 1, 0
s_lshl_b32 s77, s76, 7
s_add_u32 s77, s77, {MEM}
s_lshl_b32 s76, s76, 12
s_add_u32 s76, s76, {PART}''')
    def post(k):
        c,n=CL[ks[k]]
        if c=='L':
            for q in range(4): e.i(f'ds_write_b128 v1, {V(16+4*q,4)} offset:{n*4096+q*1024}')
        if c=='S':
            e.i(f's_add_u32 s82, s87, {n*4096}')
            for q in range(4): e.i(f'buffer_store_dwordx4 {V(16+4*q,4)}, v0, {WS}, s82 offen offset:{q*1024}')
        if k==9:
            arrive(e,32,0); e.i('s_cmp_ge_u32 s72, 32\ns_cselect_b32 s88, 1, 0'); setred()
            if os.environ.get('SLOW'): e.i('s_mov_b32 s88, 0')
            e.i('s_cmp_eq_u32 s81, 0\ns_cbranch_scc1 CH_I2\nv_mov_b32 v32, -1\nv_mov_b32 v33, -1\nv_mov_b32 v34, -1\nv_mov_b32 v35, -1\ns_cmp_eq_u32 s88, 0\ns_cbranch_scc1 CH_I1')
            for sc in ('',' sc1'):
                for rg in range(2):
                    e.i(f's_add_u32 s82, s76, {rg*327680}')
                    for q in range(4): e.i(f'buffer_store_dwordx4 v[32:35], v0, {WS}, s82 offen offset:{q*1024}{sc}')
                for rg in range(4): e.i(f's_add_u32 s82, s77, {rg*10240}\nbuffer_store_dword v32, v14, {WS}, s82 offen{sc}')
                if not sc: e.i('s_branch CH_I2'); e.lab('CH_I1')
            e.lab('CH_I2'); e.w0(); e.i(f'v_mov_b32 v32, 1\ns_mov_b64 exec, 1\nbuffer_atomic_add v32, off, {DB}, 0 offset:32\ns_mov_b64 exec, -1')
        if k==29: arrive(e,32,128)
    stage(e,un,[('s83',4096*k) for k in range(9)]+[('s84',0)],post)
    setred()
    e.i(f'''s_mov_b32 s72, 0
s_mov_b32 s80, 0
s_lshl_b32 s73, s85, 6
s_add_u32 s73, s73, {KV}
s_lshl_b32 s74, s85, 5
s_add_u32 s74, s74, {KMVM}
s_mul_i32 s75, s3, 81920
s_lshl_b32 s82, s69, 7
s_add_u32 s75, s75, s82
s_add_u32 s75, s75, {PART}
s_mul_i32 s84, s3, 2560
s_mov_b32 s79, 327680
s_lshl_b32 s85, s69, 6
s_add_u32 s85, s85, {FL_CH}
s_lshl_b32 s86, s3, 10
s_mul_i32 s82, s3, 320
v_bfe_u32 v32, v0, 4, 3
v_mul_u32_u24 v32, 1280, v32
v_lshrrev_b32 v33, 7, v0
v_lshl_add_u32 v32, v33, 4, v32''')
    e.w0(); ts(e,1,33)
    for q,o in enumerate((0,128,192)): e.i(f'buffer_load_dwordx4 {V(O[0]+4*q,4)}, v32, {OUT}, s82 offen offset:{o}')
    e.i('s_barrier'); strm(e,0); strm(e,1); p1wait(e,O[2]); e.w0()
    ts(e,2,O[2])
    e.i('s_cmp_eq_u32 s88, 0\ns_cbranch_scc1 CH_W sc1'.replace(' sc1','1'))
    loop(e,''); loop(e,' sc1')
    e.lab('CH_END'); e.w0(); e.i('s_barrier'); flagst(e,3,64,'s85'); ts(e,3,3)
def strm(e,n):
    e.i(f's_add_u32 s82, s87, {n*4096}')
    t=0
    for q in range(0 if 'd' in X else 4): t=e.i(f'buffer_load_dwordx4 {V(O[3 if n==0 else 5]+4*q,4)}, v0, {WS}, s82 offen offset:{q*1024} sc1')
    return t
def loop(e,sc):
    m='1' if sc else '0'
    SM=lambda d,a,b: e.i(f'v_smfmac_f32_16x16x64_bf16 {V(d,4)}, {V(a,4)}, {b}, v2')
    M32=lambda d,a,b,c=0: e.i(f'v_mfma_f32_16x16x32_bf16 {V(d,4)}, {V(a,4)}, {V(b,4)}, {V(c,4) if c else 0}')
    M16=lambda d,a,b,c=0: e.i(f'v_mfma_f32_16x16x16_bf16 {V(d,4)}, {V(a,2)}, {V(b,2)}, {V(c,4) if c else 0}')
    def CV(d,s,n):
        for z in range(n): e.i(f'v_cvt_pk_bf16_f32 v{d+z}, v{s+2*z}, v{s+2*z+1}')
    def Z(d,n):
        for z in range(0,n,2): e.i(f'v_mov_b64 {V(d+z,2)}, 0')
    rdA=lambda d,j: e.i(f'ds_read_b128 {V(d,4)}, v0 offset:{j*1024}')
    rdL=lambda d,n,q: e.i(f'ds_read_b128 {V(d+4*q,4)}, v1 offset:{n*4096+q*1024}')
    def T(k):
        if DBG>=2: e.i(f's_memtime s[{36+2*k}:{37+2*k}]\ns_waitcnt lgkmcnt(0)')
    e.lab('CH_W'+m); e.dv=e.nv; e.dl=e.nl
    e.i(f'v_add_u32 v{O[2]}, s84, v0')
    for q,o in enumerate((0,1024,1536)): e.i(f'ds_write_b128 v{O[2]}, {V(O[0]+4*q,4)} offset:{o}')
    Z(O[0],16); e.wl(); e.i('s_barrier'); T(0)
    AR=lambda j:(O[2],O[2]+4,O[5],O[5]+4)[j%4]
    ta={}; tl={}
    ta[0]=rdA(AR(0),0); ta[1]=rdA(AR(1),1)
    for j in range(10):
        e.wl(ta[j])
        for mi,mm in enumerate('qk'):
            c,n=CL[mm,j]
            for t in range(2):
                if c=='L': e.wl(tl[n,t])
                b=RU(n,8*t) if c=='R' else V(O[3+2*(c=='S' and n==1)+t],8)
                SM(O[mi]+4*t,AR(j),b)
                if (c=='L' and n<4) or (c,n)==('S',0):
                    n2=n+1 if c=='L' else 0
                    for q in range(2): tl[n2,t]=rdL(O[3],n2,2*t+q)
                if j==0 and mi==1:
                    if t==0: ta[2]=rdA(AR(2),2); ta[3]=rdA(AR(3),3)
                    else:
                        for q in range(2): tk=e.i(f'buffer_load_dwordx4 {V(O[6]+4*q,4)}, v0, {WS}, s73 offen offset:{q*1024} sc1')
                if j>=1 and mi==0 and t==0:
                    if j+3<10: ta[j+3]=rdA(AR(j+3),j+3)
                    elif j<9: ta['v',j-7]=rdA(O[5]+4*(j-7),j-7)
    for q in range(2): tv=e.i(f'buffer_load_dwordx4 {V(O[2]+4*q,4)}, v0, {WS}, s73 offen offset:{2048+q*1024} sc1')
    T(1)
    Z(O[4],8)
    def vk(j):
        e.wl(ta['v',j])
        for t in range(2): SM(O[4]+4*t,O[5]+4*(j%2),RU(CL['v',j][1],8*t))
        if j<8: ta['v',j+2]=rdA(O[5]+4*(j%2),j+2)
    CV(O[3],O[0],4); vk(0)
    for t in range(2): M16(O[0]+4*t,O[3]+2*t,4)
    CV(O[3]+4,O[1],4)
    for t in range(2): M16(O[1]+4*t,O[3]+4+2*t,4)
    vk(1); CV(O[3],O[0],4); e.wv(tk)
    for t in range(2): M32(O[0]+4*t,O[6]+4*t,O[3])
    CV(O[3]+4,O[1],4); M32(O[1],O[3]+4,O[3])
    vk(2); e.i(f'v_add_u32 v{O[1]+4}, s86, v0\nv_lshrrev_b32 v{O[1]+5}, 1, v{O[1]+4}\nv_lshrrev_b32 v{O[3]+2}, 1, v0'); vk(3)
    e.i(f's_mov_b64 exec, s[92:93]\nv_mov_b64 {V(O[0],2)}, {V(O[0]+4,2)}\nv_mov_b64 {V(O[0]+2,2)}, {V(O[0]+6,2)}\nv_mov_b64 {V(O[1],2)}, {V(O[1]+2,2)}\ns_mov_b64 exec, -1')
    e.i(f'ds_write_b128 v{O[1]+4}, {V(O[0],4)} offset:10240'); tw=e.i(f'ds_write_b64 v{O[1]+5}, {V(O[1],2)} offset:14336')
    vk(4); vk(5); e.wl(tw); e.i('s_barrier'); T(2)
    ts_=[]
    for w in range(4):
        e.i(f'ds_read_b128 {V(O[0]+4*w,4)}, v0 offset:{10240+1024*w}'); ts_.append(e.i(f'ds_read_b64 {V(O[6]+2*w,2)}, v{O[3]+2} offset:{14336+512*w}'))
    vk(6); vk(7)
    PA=lambda d,a,b: e.i(f'v_pk_add_f32 {V(d,2)}, {V(a,2)}, {V(b,2)}')
    e.wl(ts_[1]); PA(O[0],O[0],O[0]+4); PA(O[0]+2,O[0]+2,O[0]+6); PA(O[6],O[6],O[6]+2)
    e.wl(ts_[3]); PA(O[1],O[1],O[1]+4); PA(O[1]+2,O[1]+2,O[1]+6); PA(O[6]+4,O[6]+4,O[6]+6)
    PA(O[0],O[0],O[1]); PA(O[0]+2,O[0]+2,O[1]+2); PA(O[3],O[6],O[6]+4)
    x,y=O[1]+6,O[1]+7; t0=O[0]; m0=O[3]
    e.i(f'v_max3_f32 v{x}, v{t0}, v{t0+1}, v{t0+2}\nv_max3_f32 v{x}, v{x}, v{t0+3}, v{m0}\nv_max_f32 v{x}, v{x}, v{m0+1}')
    vk(8); e.i(f'v_max_f32_dpp v{x}, v{x}, v{x} row_ror:8 row_mask:0xf bank_mask:0xf\nv_mov_b32 v{y}, v{x}')
    vk(9); e.i(f'v_permlane16_swap_b32 v{x}, v{y}\nv_max_f32 v{x}, v{x}, v{y}\nv_mov_b32 v{y}, v{x}')
    t2=strm(e,2)
    e.i(f'v_permlane32_swap_b32 v{x}, v{y}\nv_max_f32 v{x}, v{x}, v{y}\nv_mul_f32 v{x}, s94, v{x}')
    if 'a' not in X: e.i(f'buffer_store_dwordx4 {V(O[3]+4,4)}, v0, {WS}, s74 offen sc1')
    for r in (t0,t0+2,m0): e.i(f'v_pk_fma_f32 {V(r,2)}, {V(r,2)}, s[94:95], {V(x,2)} op_sel_hi:[1,1,0] neg_lo:[0,0,1] neg_hi:[0,0,1]')
    for r in (t0,t0+1,t0+2,t0+3,m0,m0+1): e.i(f'v_exp_f32 v{r}, v{r}')
    B=O[1]; CV(B,t0,2); CV(B+4,m0,1)
    for r in range(4): e.i(f'v_mov_b32 v{O[3]+4+r}, 0x3f803f80')
    for d,s in ((2,0),(3,1),(5,4)): e.i(f'v_mov_b32_dpp v{B+d}, v{B+s} row_ror:8 row_mask:0xf bank_mask:0xf')
    CV(O[0]+4,O[4],4)
    e.wv(tv); M32(O[0],O[3]+4,B)
    e.i(f'v_mov_b32 v{O[3]+2}, 0x3f003f00\nv_mov_b32 v{O[3]+3}, 0x3f003f00')
    M32(O[4],O[2],B); M16(O[0],O[3]+2,B+4,O[0]); M32(O[4]+4,O[2]+4,B)
    for t in range(2): M16(O[4]+4*t,O[0]+4+2*t,B+4,O[4]+4*t)
    if 'a' not in X: e.i(f'buffer_store_dwordx4 {V(O[0]+4,4)}, v0, {WS}, s74 offen offset:1024 sc1')
    e.i(f's_cmp_eq_u32 s72, 63\ns_cbranch_scc1 CH_END\ns_add_u32 s73, s73, {0 if "e" in X else 524288}\ns_add_u32 s74, s74, 262144\nv_lshlrev_b32 v3, 2, v0')
    e.i(f'v_rcp_f32 v{x}, v{O[0]}')
    if 'B' in X: e.i(f'buffer_load_dword v3, v3, {WS}, s73 offen sc1')
    if 'c' not in X: e.i(f'v_mov_b32 v{y}, s72\nbuffer_store_dword v{y}, off, {WS}, s85 sc1')
    e.i(f'v_lshl_add_u32 v{O[3]}, s3, 9, v6')
    for r in range(0,8,2): e.i(f'v_pk_mul_f32 {V(O[4]+r,2)}, {V(O[4]+r,2)}, {V(x,2)} op_sel_hi:[1,0]')
    CV(B,O[4],4)
    e.i('s_mov_b64 exec, s[90:91]'); tw=e.i(f'ds_write_b128 v{O[3]}, {V(B,4)}'); e.i('s_mov_b64 exec, -1')
    for q in range(4): tl[5,q//2]=rdL(O[3],5,q)
    Z(O[2],8); e.wl(tw); e.i('s_barrier'); T(3)
    to=[e.i(f'ds_read_b128 {V(O[0]+4*k,4)}, v6 offset:{512*k}') for k in range(4)]
    def fin(u):
        a=O[2]+4*(u%2); CV(a,a,2); e.i(f's_add_u32 s82, s75, {u*16384}\nbuffer_store_dwordx2 {V(a,2)}, v7, {WS}, s82 offen{sc}')
        if u<3: Z(a,4)
    for p in range(10):
        c,n=CL['o',p]; ld=O[3+(p&2)]
        for t in range(2):
            e.wl(to[2*(p%2)+t])
            if c=='L': e.wl(tl[n,t])
            if c=='S': e.wv(t2)
            SM(O[2]+4*(p//2%2),O[0]+8*(p%2)+4*t,RU(n,8*t) if c=='R' else V(ld+8*t,8))
            if p in (0,2,4):
                for q in range(2): tl[6+p//2,t]=rdL(ld,6+p//2,2*t+q)
        if p%2 and p>1: fin(p//2-1)
    fin(4); T(4)
    strm(e,0); strm(e,1)
    e.i(f's_barrier\ns_add_u32 s75, s75, s79\ns_add_u32 s72, s72, 1\ns_and_b32 s82, s72, 3\ns_mul_i32 s78, s82, 10240\ns_cmp_eq_u32 s81, 0\ns_cbranch_scc1 CH_M{m}')
    s=O[2]
    e.i(f'''v_bfe_u32 v{s+5}, v0, 4, 1
v_bfe_u32 v{s+6}, v0, 5, 3
v_and_b32 v{s+4}, 0x300, v0
v_lshl_add_u32 v{s+4}, v{s+5}, 7, v{s+4}
v_lshl_add_u32 v{s+4}, v{s+6}, 4, v{s+4}
v_lshlrev_b32 v{s+5}, 4, v{s+5}
v_mov_b32 v{s+7}, 0x3f80
v_lshlrev_b32 v{s+5}, v{s+5}, v{s+7}
v_and_b32 v{s+6}, 3, v{s+6}''')
    for z in range(4): e.i(f'v_cmp_eq_u32 vcc, {z}, v{s+6}\nv_cndmask_b32 v{s+z}, 0, v{s+5}, vcc')
    l=e.new(); e.lab(l); R=O[0]
    tp=[e.i(f'buffer_load_dwordx4 {V(R+4*q,4)}, v{s+4}, {WS}, s76 offen offset:{q*1024} sc1') for q in range(4)]
    e.wv(tp[1]); e.i(f'v_max3_u32 v{s+5}, v{R}, v{R+2}, v{R+4}'); e.wv(tp[2]); e.i(f'v_max3_u32 v{s+5}, v{s+5}, v{R+6}, v{R+8}'); e.wv()
    e.i(f'v_max3_u32 v{s+5}, v{s+5}, v{R+10}, v{R+12}\nv_max_u32 v{s+5}, v{s+5}, v{R+14}\nv_cmp_eq_u32 vcc, -1, v{s+5}'); spin(e,l)
    T(5)
    for q in range(4): M32(s+4,R+4*q,s,s+4 if q else 0)
    e.i(f'v_and_b32 v{R+4}, 0x70, v0\nv_lshrrev_b32 v{R+5}, 8, v0\nv_lshl_add_u32 v{R+4}, v{R+5}, 2, v{R+4}\nv_mov_b64 {V(R,2)}, -1\nv_mov_b64 {V(R+2,2)}, -1\ns_add_u32 s82, s77, s78\ns_add_u32 s89, s72, 2\ns_and_b32 s89, s89, 3')
    e.i(f'v_add_f32 v{s+4}, v{s+4}, v{s+5}\nv_add_f32 v{s+5}, v{s+6}, v{s+7}'); CV(s+4,s+4,1)
    e.i(f'buffer_store_dword v{s+4}, v{R+4}, {WS}, s82 offen{sc}\ns_mul_i32 s89, s89, 10240\ns_add_u32 s89, s89, s77')
    for q in range(4): e.i(f'buffer_store_dwordx4 {V(R,4)}, v0, {WS}, s76 offen offset:{q*1024}{sc}')
    e.i(f'buffer_store_dword v{R}, v{R+4}, {WS}, s89 offen{sc}\ns_add_u32 s76, s76, s79')
    e.lab('CH_M'+m); e.i(f's_sub_u32 s79, 0, s79\ns_add_u32 s78, s78, s84\ns_add_u32 s78, s78, {MEM}')
    p1wait(e,s)
    if DBG>=2:
        T(6); e.i(f's_lshl_b32 s97, s69, 2\ns_add_u32 s97, s97, s3\ns_lshl_b32 s97, s97, 12\ns_lshl_b32 s96, s72, 5\ns_add_u32 s97, s97, s96\ns_add_u32 s97, s97, {TS}')
        for k in range(8): e.i(f'v_mov_b32 v{s+k}, s{36+2*k}')
        for k in range(2): e.i(f'buffer_store_dwordx4 {V(s+4*k,4)}, off, {WS}, s97 offset:{32+16*k}')
    l=e.new(); e.lab(l)
    tp=[e.i(f'buffer_load_dwordx4 {V(R+4*q,4)}, v0, {WS}, s78 offen offset:{o} sc1') for q,o in enumerate((0,1024,1536))]
    e.wv(tp[0]); e.i(f'v_max3_u32 v{s}, v{R}, v{R+1}, v{R+2}'); e.wv(tp[1]); e.i(f'v_max3_u32 v{s}, v{s}, v{R+3}, v{R+4}\nv_max3_u32 v{s}, v{s}, v{R+5}, v{R+6}'); e.wv()
    e.i(f'v_max3_u32 v{s}, v{s}, v{R+7}, v{R+8}\nv_max3_u32 v{s}, v{s}, v{R+9}, v{R+10}\nv_max_u32 v{s}, v{s}, v{R+11}\nv_cmp_eq_u32 vcc, -1, v{s}')
    T(7)
    e.i(f's_cbranch_vccz CH_W{m}\ns_sub_u32 s68, s68, 1\ns_cbranch_scc0 {l}\ns_mov_b32 s68, 0\ns_branch CH_W{m}')
```

```python
from em import *
import os
DBG=int(os.environ.get('DBG','0'))
FL_P1,FL_CH,FL_P3,FL_T1=0,4096,8192,16384
G_,KVA,MEM,PART,STREAM,OA,QA,KV,Q_,O_,KMVM,TS=0x8000,0x10000,0x50000,0x100000,0x200000,0x400000,0x800000,0x1000000,0x3000000,0x4000000,0x5000000,0x6000000
WS,X_,W0,W1,W2,W3,DB,OUT=[S(b,4) for b in (4,8,12,16,20,24,28,32)]
PT=dict(x=36,wq=38,wk=40,wv=42,wo=44,mem0=48,Wq=50,Wk=52,Wv=54,Wo=56,gate=60,out=62,dbg=64,ws=66)
SZ=dict(x=2621440,wq=819200,wk=25600,wv=25600,wo=819200,mem0=10240,Wq=5242880,Wk=5242880,Wv=5242880,Wo=5242880,gate=1280,out=2621440,dbg=256,ws=0x10000000)
def srd(e,b,n):
    e.i(f's_mov_b32 s{b}, s{PT[n]}\ns_mov_b32 s{b+1}, s{PT[n]+1}\ns_mov_b32 s{b+2}, {SZ[n]}\ns_mov_b32 s{b+3}, 0x20000')
def spin(e,loop,br='s_cbranch_vccz'):
    d=e.new('D'); e.i(f'{br} {d}\ns_sub_u32 s68, s68, 1\ns_cbranch_scc0 {loop}\ns_mov_b32 s68, 0'); e.lab(d)
def lane(e,v): e.i(f'v_mbcnt_lo_u32_b32 v{v}, -1, 0\nv_mbcnt_hi_u32_b32 v{v}, -1, v{v}')
def ts(e,slot,v,lvl=1,rt=True):
    if DBG<lvl: return
    e.i(f"{'s_memrealtime' if rt else 's_memtime'} s[98:99]\ns_lshl_b32 s97, s69, 2\ns_add_u32 s97, s97, s3\ns_lshl_b32 s97, s97, 12\ns_add_u32 s97, s97, {TS}")
    if isinstance(slot,str): e.i(f's_add_u32 s97, s97, {slot}'); slot=0
    e.i(f's_waitcnt lgkmcnt(0)\nv_mov_b32 v{v}, s98\nbuffer_store_dword v{v}, off, {WS}, s97 offset:{slot*4}')
def arrive(e,v,n8):
    lane(e,v); e.i(f'v_lshlrev_b32 v{v}, 2, v{v}')
    l=e.new(); e.lab(l)
    e.i(f'buffer_load_dword v{v+1}, v{v}, {DB}, 0 offen sc1\ns_waitcnt vmcnt(0)'); e.dv=e.nv
    for k in range(9): e.i(f'v_readlane_b32 s{72+k}, v{v+1}, {k}')
    e.i('s_mov_b32 s81, 0\ns_mov_b32 s69, s71')
    for k in range(8): e.i(f's_add_u32 s81, s81, s{72+k}\ns_cmp_gt_u32 s70, {k}\ns_cselect_b32 s82, s{72+k}, 0\ns_add_u32 s69, s69, s82')
    e.i(f's_cmp_ge_u32 s80, {n8}\ns_cselect_b32 s81, s81, 0\ns_cmp_ge_u32 s81, 256')
    spin(e,l,'s_cbranch_scc1')
def stage(e,units,slots,post=None):
    n=len(slots); tok={}
    def issue(k):
        sr,vo,sb,co,st,nd,_=units[k]; ms,mc=slots[k%n]
        e.i(f's_add_u32 m0, {ms}, {mc}')
        if co is not None: e.i(f's_add_u32 s96, {sb}, {co}'); sb='s96'
        for x in range(nd):
            tok[k]=e.i(f'buffer_load_dwordx4 {vo}, {sr}, {sb} offen lds')
            e.i(f's_add_u32 {sb}, {sb}, {st}')
            if x<nd-1: e.i('s_add_u32 m0, m0, 1024')
    for k in range(min(n,len(units))): issue(k)
    for k in range(len(units)):
        e.wv(tok[k])
        for d,a,o in units[k][6](k%n): e.i(f'ds_read_b64_tr_b16 {d}, {a} offset:{o}')
        e.wl()
        if post: post(k)
        if k+n<len(units): issue(k+n)
def flagst(e,v,val,soff,off=0):
    e.i(f'v_mov_b32 v{v}, {val}'); return e.i(f'buffer_store_dword v{v}, off, {WS}, {soff} offset:{off} sc1')
```

```python
import re
TRANS=('v_exp_','v_log_','v_rcp_','v_rsq_','v_sqrt_','v_sin_','v_cos_')
def regs(op):
    op=op.strip().lstrip('-').strip('|')
    m=re.fullmatch(r'([vas])(\d+)',op)
    if m: return {(m[1],int(m[2]))}
    m=re.fullmatch(r'([vas])\[(\d+):(\d+)\]',op)
    if m: return {(m[1],i) for i in range(int(m[2]),int(m[3])+1)}
    if op=='vcc': return {('s','vcc')}
    if op=='m0': return {('s','m0')}
    return set()
class Ins:
    def __init__(s,t):
        s.t=t; p=t.split(None,1); s.op=op=p[0]
        ops=[o.strip() for o in p[1].split(',')] if len(p)>1 else []
        ops=[x for x in ops]
        fix=[]
        for o in ops: fix.append(o.split()[0] if o else o)
        R=[regs(o) for o in fix]; U=lambda l:set().union(*l) if l else set()
        s.mf=op.startswith(('v_mfma','v_smfmac')); s.valu=op.startswith('v_') and not s.mf
        s.vmem=op.startswith('buffer_'); s.ds=op.startswith('ds_')
        s.dma=s.vmem and t.rstrip().endswith(' lds')
        s.d=set(); s.r=set(); s.c=set(); s.wide=set(); s.st=1
        if s.mf:
            s.d=R[0]; s.big='32x32' in op
            if 'smfmac' in op: s.c=R[0]; s.r=R[1]|R[2]|R[3]
            else: s.c=R[3]; s.r=R[1]|R[2]
        elif s.valu:
            s.d=R[0]; s.r=U(R[1:])
            if 'permlane' in op: s.d=s.r=R[0]|R[1]
            if 'fmac' in op or '_dpp' in op: s.r=s.r|R[0]
        elif s.ds:
            if 'read' in op: s.d=R[0]; s.r=U(R[1:])
            else:
                s.r=U(R)
                if 'b128' in op: s.wide=R[1]
        elif s.vmem:
            if 'load' in op and not s.dma: s.d=R[0]; s.r=U(R[1:])
            else:
                s.r=U(R)
                if 'x4' in op and not s.dma: s.wide=R[0]
                if 'atomic' in op: s.d=R[0]
        elif op=='s_nop': s.st=int(ops[0])+1
        elif op.startswith('s_') and R and not op.startswith('s_cmp'): s.d=R[0]; s.r=U(R[1:])
        s.dpp=s.valu and ('_dpp' in op or 'permlane' in op)
        s.tr=op.startswith(TRANS)
def need(p,c):
    n=0
    if p.valu:
        vd={x for x in p.d if x[0]!='s'}; sd=p.d-vd
        if c.mf and vd&(c.r|c.c): n=2
        if c.dpp and vd&c.r: n=2
        if p.tr and vd&c.r: n=max(n,1)
        if 'lane_b32' in c.op and c.op.startswith('v_read') and vd&c.r: n=max(n,1)
        if sd&c.r:
            if c.valu: n=max(n,4 if 'lane' in c.op else 2)
            if c.vmem: n=5
    elif p.mf:
        a,b,w=(12,10,7) if p.big else (8,6,3)
        if c.mf:
            if p.d&c.r: n=a
            elif p.d&(c.c|c.d) and not (p.d==c.c==c.d and p.big==c.big): n=b
        else:
            if p.d&(c.r|c.d): n=a
            elif c.valu and p.c&c.d: n=w
    elif p.wide:
        if c.valu and p.wide&c.d: n=2
    elif ('s','m0') in p.d and c.dma: n=1
    return n
class E:
    def __init__(s):
        s.L=[]; s.h=[]; s.nv=0; s.nl=0; s.dv=0; s.dl=0; s.u=0
    def i(s,t):
        for x in t.split('\n'):
            x=x.strip()
            if x: r=s.one(x)
        return r
    def one(s,t):
        c=Ins(t); dist=0; w=0
        for p in reversed(s.h):
            w=max(w,need(p,c)-dist); dist+=p.st
            if dist>=12: break
        while w>0:
            k=min(w,8); n=Ins('s_nop %d'%(k-1)); s.h.append(n); s.L.append('  '+n.t); w-=k
        s.h.append(c); s.h=s.h[-14:]; s.L.append('  '+t)
        if c.vmem: s.nv+=1; return s.nv
        if c.ds: s.nl+=1; return s.nl
    def wv(s,tok=None):
        tok=s.nv if tok is None else tok
        if tok>s.dv:
            n=s.nv-tok; assert n<64,n
            s.one('s_waitcnt vmcnt(%d)'%n); s.dv=tok
    def wl(s,tok=None):
        tok=s.nl if tok is None else tok
        if tok>s.dl:
            n=min(s.nl-tok,15); s.one('s_waitcnt lgkmcnt(%d)'%n); s.dl=s.nl-n
    def w0(s):
        s.one('s_waitcnt vmcnt(0) lgkmcnt(0)'); s.dv=s.nv; s.dl=s.nl
    def lab(s,n): s.L.append(n+':')
    def new(s,p='L'):
        s.u+=1; return '%s_%d'%(p,s.u)
def V(b,n=1,k='v'): return '%s%d'%(k,b) if n==1 else '%s[%d:%d]'%(k,b,b+n-1)
def A(b,n=1): return V(b,n,'a')
def S(b,n=1): return V(b,n,'s')
```

```python
from common import *
def p0(e):
    e.i('s_cmp_ge_u32 s2, 256\ns_cbranch_scc1 END\ns_load_dwordx16 s[36:51], s[0:1], 0\ns_load_dwordx16 s[52:67], s[0:1], 64')
    e.i('v_lshrrev_b32 v1, 6, v0\nv_readfirstlane_b32 s3, v1\ns_getreg_b32 s70, hwreg(HW_REG_XCC_ID)\ns_and_b32 s70, s70, 7\ns_mov_b32 s68, 200000\ns_waitcnt lgkmcnt(0)')
    for b,n in ((4,'ws'),(8,'x'),(28,'dbg')): srd(e,b,n)
    e.i('s_cmp_lg_u32 s3, 0\ns_cbranch_scc1 P0_B')
    e.i(f'v_lshlrev_b32 v1, 2, v0\nv_mov_b32 v2, 0\ns_lshl_b32 s72, s2, 7\ns_mov_b32 exec_hi, 0\nbuffer_store_dword v2, v1, {WS}, s72 offen sc1\ns_mov_b64 exec, 1\nv_mov_b32 v2, 1\ns_lshl_b32 s72, s70, 2\ns_waitcnt vmcnt(0)')
    e.i(f'buffer_atomic_add v2, off, {DB}, s72 sc0\ns_waitcnt vmcnt(0)\nv_readfirstlane_b32 s71, v2\ns_mov_b64 exec, -1\ns_mov_b32 s69, s71')
    e.i('s_cmp_lt_u32 s71, 32\ns_cselect_b32 s72, s70, 1\ns_cmp_eq_u32 s72, 0\ns_cbranch_scc1 P0_A')
    arrive(e,1,0)
    e.lab('P0_A'); e.i('v_mov_b32 v1, 0\nv_mov_b32 v2, s69\nv_mov_b32 v3, s71\nds_write_b64 v1, v[2:3]\ns_waitcnt lgkmcnt(0)')
    e.lab('P0_B'); e.i('s_barrier\nv_mov_b32 v1, 0\nds_read_b64 v[2:3], v1\ns_waitcnt lgkmcnt(0)\nv_readfirstlane_b32 s69, v2\nv_readfirstlane_b32 s71, v3\ns_barrier')
    e.dl=e.nl; e.dv=e.nv
    ts(e,0,1)
    e.i('s_cmp_lt_u32 s69, 32\ns_cbranch_scc1 CHAIN')
def wreg(n,o=0,k=4): return A(4*n+o,k) if n<64 else V(192+4*(n-64)+o,k)
def p1(e):
    e.i('s_sub_u32 s72, s69, 32\ns_and_b32 s73, s72, 3\ns_lshr_b32 s72, s72, 2\ns_cmp_gt_u32 s72, 52\ns_cbranch_scc1 P1_END')
    e.i('s_lshl_b32 s85, s72, 4\ns_lshl_b32 s86, s73, 2\ns_add_u32 s85, s85, s86\ns_lshl_b32 s86, s3, 6')
    e.i('s_cmp_ge_u32 s72, 32\ns_cbranch_scc1 P1_C1')
    srd(e,12,'Wk'); srd(e,16,'Wv')
    e.i(f's_mov_b32 s74, 0\ns_lshl_b32 s75, s72, 8\ns_add_u32 s75, s75, s86\ns_mov_b32 s76, s75\ns_mov_b32 s77, 8192\ns_lshl_b32 s78, s75, 6\ns_add_u32 s78, s78, {KV}\ns_add_u32 s79, s78, 2048\ns_mov_b32 s80, 524288\ns_branch P1_GO')
    e.lab('P1_C1'); e.i('s_cmp_ge_u32 s72, 48\ns_cbranch_scc1 P1_C2')
    srd(e,12,'Wq'); srd(e,16,'Wq')
    e.i(f's_mov_b32 s74, 1\ns_sub_u32 s75, s72, 32\ns_lshl_b32 s75, s75, 9\ns_add_u32 s75, s75, s86\ns_add_u32 s76, s75, 256\ns_mov_b32 s77, 8192\ns_lshl_b32 s78, s75, 5\ns_add_u32 s78, s78, {Q_}\ns_add_u32 s79, s78, 8192\ns_mov_b32 s80, 262144\ns_branch P1_GO')
    e.lab('P1_C2'); e.i('s_cmp_ge_u32 s72, 52\ns_cbranch_scc1 P1_C3')
    srd(e,12,'wq'); srd(e,16,'wq')
    e.i(f's_mov_b32 s74, 2\ns_sub_u32 s78, s72, 48\ns_lshl_b32 s78, s78, 2\ns_add_u32 s78, s78, s3\ns_mul_i32 s75, s78, 80\ns_add_u32 s76, s75, 40\ns_mov_b32 s77, 1280\ns_lshl_b32 s78, s78, 12\ns_add_u32 s78, s78, {QA}\ns_add_u32 s79, s78, 2048\ns_mov_b32 s80, 65536\ns_branch P1_GO')
    e.lab('P1_C3'); srd(e,12,'wk'); srd(e,16,'wv')
    e.i(f's_mov_b32 s74, 3\ns_mov_b32 s75, 0\ns_mov_b32 s76, 0\ns_mov_b32 s77, 40\ns_mov_b32 s78, {KVA}\ns_mov_b32 s79, {KVA+2048}\ns_mov_b32 s80, 4096')
    e.lab('P1_GO')
    e.i('s_mul_i32 s86, s80, s73\ns_add_u32 s78, s78, s86\ns_add_u32 s79, s79, s86\ns_lshl_b32 s80, s80, 2\ns_mul_i32 s81, s73, 40960\ns_mul_i32 s84, s3, 40960\ns_lshl_b32 s87, s77, 4')
    lane(e,0)
    e.i('''v_lshrrev_b32 v11, 2, v0
v_mul_lo_u32 v1, v11, s77
v_and_b32 v12, 3, v0
v_lshl_add_u32 v1, v12, 4, v1
v_lshrrev_b32 v10, 5, v0
v_and_b32 v11, 3, v11
v_lshl_add_u32 v11, v10, 3, v11
v_lshlrev_b32 v2, 6, v11
v_bfe_u32 v13, v0, 4, 1
v_lshl_add_u32 v2, v13, 5, v2
v_lshl_add_u32 v2, v12, 3, v2
v_add_u32 v2, s84, v2
v_lshrrev_b32 v11, 3, v0
v_lshl_add_u32 v11, s3, 3, v11
v_bfe_u32 v12, v11, 1, 3
v_and_b32 v14, 7, v0
v_xor_b32 v12, v12, v14
v_mul_u32_u24 v3, 1280, v11
v_lshl_add_u32 v3, v12, 4, v3
v_and_b32 v11, 31, v0
v_bfe_u32 v12, v0, 1, 3
v_xor_b32 v12, v12, v10
v_lshlrev_b32 v11, 7, v11
v_lshl_add_u32 v4, v12, 4, v11
v_xor_b32 v5, 32, v4
v_xor_b32 v6, 64, v4
v_xor_b32 v7, 0x60, v4
v_and_b32 v11, 15, v0
v_lshlrev_b32 v8, 4, v11
v_lshl_add_u32 v8, v13, 10, v8
v_lshl_add_u32 v8, v10, 8, v8
v_lshlrev_b32 v9, 4, v0''')
    un=[]
    for c in range(2):
        for J in range(10):
            un.append(((W0,W1)[c],'v1',f's{75+c}',None,'s87',4,lambda sl,c=c,J=J:[(wreg(c*40+4*J+q,2*x,2),'v2',sl*4096+(16*q+4*x)*64) for q in range(4) for x in range(2)]))
    stage(e,un,[('s84',k*4096) for k in range(10)])
    e.i('s_lshl_b32 s86, s74, 2\ns_add_u32 s86, s86, s3\ns_cmp_lg_u32 s86, 13\ns_cbranch_scc1 P1_NG')
    srd(e,12,'gate'); e.i('v_lshlrev_b32 v11, 4, v10')
    for k in range(40): e.i(f'buffer_load_dwordx4 {wreg(k)}, v11, {W0}, 0 offen offset:{k*32}')
    e.i(f's_lshl_b32 s78, s73, 7\ns_add_u32 s78, s78, {G_}\ns_mov_b32 s80, 512')
    e.lab('P1_NG'); e.i('s_barrier\ns_lshl_b32 s84, s3, 10\ns_mov_b32 s83, 40960\ns_mov_b32 s82, 0\ns_mov_b32 m0, s84')
    ts(e,1,11)
    def dma(J): e.i(f'buffer_load_dwordx4 v3, {X_}, s81 offen offset:{J*128} lds\ns_add_u32 m0, m0, 3968')
    for J in range(10): dma(J)
    e.w0()
    e.lab('P1_LOOP')
    e.i('s_waitcnt vmcnt(4)\ns_barrier\ns_add_u32 s84, s84, s83\ns_mov_b32 m0, s84\ns_add_u32 s81, s81, 163840')
    e.i('s_cmp_lg_u32 s3, 0\ns_cbranch_scc1 P1_NF\ns_max_i32 s86, s82, 1\ns_sub_u32 s86, s86, 1'); flagst(e,11,'s86','s85'); e.lab('P1_NF')
    e.i('s_add_u32 s86, s74, 1\ns_and_b32 s86, s86, 2\ns_cbranch_scc1 P1_TT')
    for form in ('TD','TT'):
        e.lab('P1_'+form); tk={}; e.dl=e.nl
        def rd(k): tk[k]=e.i(f'ds_read_b128 {V(48+4*(k%8),4)}, v{4+k%4} offset:{(k//4)*4096}')
        for k in range(7): rd(k)
        for k in range(40):
            e.wl(tk[k]); x=V(48+4*(k%8),4)
            e.i(f"v_mfma_f32_32x32x16_bf16 v[16:31], {wreg(k)}, {x}, {'v[16:31]' if k else 0}")
            if k+7<40: rd(k+7)
            a,b=(wreg(40+k),x) if form=='TT' else (x,wreg(40+k))
            e.i(f"v_mfma_f32_32x32x16_bf16 v[32:47], {a}, {b}, {'v[32:47]' if k else 0}")
            if k<10: dma(k)
            if k>=36: e.i(f'v_add_u32 v{4+k%4}, s83, v{4+k%4}')
        if form=='TD': e.i('s_branch P1_EP')
    e.lab('P1_EP'); e.i('s_sub_u32 s83, 0, s83\ns_cmp_ge_u32 s74, 2\ns_cbranch_scc1 P1_EA')
    def pack(c,gs,vo,st):
        for j,(g0,g1) in enumerate(gs):
            t=80+8*c+4*j
            for q,g in enumerate((g0,g1)):
                for z in range(2): e.i(f'v_cvt_pk_bf16_f32 v{t+2*q+z}, v{16+16*c+4*g+2*z}, v{17+16*c+4*g+2*z}')
            e.i(f'buffer_store_dwordx4 {V(t,4)}, {vo}, {WS}, s{78+c} offen offset:{j*st} sc1')
    for c in range(2): pack(c,((0,2),(1,3)),'v8',512)
    e.i('s_branch P1_NX')
    e.lab('P1_EA'); e.i('s_nop 7\ns_nop 3\ns_cmp_eq_u32 s74, 3\ns_cbranch_scc1 P1_EK\ns_mov_b32 s86, 0x3ea52b5c')
    for r in range(16,48): e.i(f'v_mul_f32 v{r}, s86, v{r}')
    e.lab('P1_EA2')
    for c in range(2): pack(c,((0,1),(2,3)),'v9',1024)
    e.i('s_branch P1_NX')
    e.lab('P1_EK'); e.i('s_cmp_lg_u32 s3, 0\ns_cbranch_scc1 P1_EG')
    for r in range(28,32): e.i(f'v_mov_b32 v{r}, 0')
    e.i('s_mov_b32 exec_lo, 0')
    for r in range(24,28): e.i(f'v_mov_b32 v{r}, 0')
    e.i('s_mov_b32 exec_lo, 0xfff00000\ns_mov_b32 exec_hi, 0xfff00000')
    for r in range(32,48): e.i(f'v_mov_b32 v{r}, 1.0')
    e.i('s_mov_b64 exec, -1\ns_branch P1_EA2')
    e.lab('P1_EG'); e.i(f's_cmp_lg_u32 s3, 1\ns_cbranch_scc1 P1_EZ\nv_mul_f32 v16, 0xbfb8aa3b, v16\nv_exp_f32 v16, v16\nv_add_f32 v16, 1.0, v16\nv_rcp_f32 v16, v16\nv_and_b32 v11, 31, v0\nv_lshlrev_b32 v11, 2, v11\nbuffer_store_dword v16, v11, {WS}, s78 offen sc1')
    e.lab('P1_EZ'); e.i('s_waitcnt vmcnt(0)')
    e.lab('P1_NX'); e.i('s_add_u32 s78, s78, s80\ns_add_u32 s79, s79, s80\ns_add_u32 s82, s82, 1\ns_cmp_lt_u32 s82, 16\ns_cbranch_scc1 P1_LOOP')
    e.w0(); e.i('s_barrier'); flagst(e,11,16,'s85')
    e.lab('P1_END'); ts(e,2,11)
```

```python
from common import *
def CV(e,d,s,n):
    for z in range(n): e.i(f'v_cvt_pk_bf16_f32 v{d+z}, v{s+2*z}, v{s+2*z+1}')
def LD(e,d,vo,so,o=0,k='v'): return e.i(f'buffer_load_dwordx4 {V(d,4,k)}, {vo}, {WS}, {so} offen offset:{o} sc1')
def poll(e,va,vt,so,cmp,val):
    l=e.new(); e.lab(l); e.i(f'buffer_load_dword v{vt}, v{va}, {WS}, {so} offen sc1\ns_waitcnt vmcnt(0)\nv_cmp_{cmp}_u32 vcc, {val}, v{vt}'); e.dv=e.nv; spin(e,l)
def workers(e,PH):
    e.i('s_sub_u32 s72, s69, 32\ns_and_b32 s73, s72, 31\ns_lshr_b32 s72, s72, 5\ns_mul_i32 s74, s72, 20\ns_add_u32 s74, s74, s73\ns_cmp_lt_u32 s73, 20\ns_cbranch_scc1 P3')
    e.i('s_mul_i32 s74, s72, 12\ns_add_u32 s74, s74, s73\ns_sub_u32 s74, s74, 20\ns_cmp_lt_u32 s74, 32\ns_cbranch_scc1 T1\ns_add_u32 s74, s74, 108')
    p3(e); e.i('s_cmp_ge_u32 s73, 20\ns_cbranch_scc1 END'); t2(e); e.i('s_branch END'); t1(e)
def p3(e):
    e.lab('P3'); e.i('s_lshl_b32 s74, s74, 2\ns_add_u32 s74, s74, s3\ns_mul_i32 s74, s74, 3\ns_cmp_ge_u32 s74, 2048\ns_cbranch_scc1 P3_END')
    lane(e,1); e.i('v_lshlrev_b32 v0, 4, v1\nv_min_u32 v2, 19, v1\nv_lshlrev_b32 v2, 2, v2\ns_movk_i32 s75, 768'); poll(e,2,3,'s75','ne',16)
    Sx,Ox,Nx,Px,Qx,Kx,Vx=16,64,112,160,184,208,224
    for j in range(3):
        e.i(f's_add_u32 s{76+j}, s74, {j}\ns_min_u32 s{76+j}, s{76+j}, 2047\ns_lshl_b32 s75, s{76+j}, 11\ns_add_u32 s75, s75, {QA}')
        for k in range(2): LD(e,Qx+8*j+4*k,'v0','s75',1024*k)
    e.i(f's_mov_b32 s79, {KVA}\ns_mov_b32 s80, {KVA+4096}')
    for d,so,o in ((Kx,79,0),(Vx,79,2048),(Kx+8,80,0)):
        for k in range(2): LD(e,d+4*k,'v0',f's{so}',o+1024*k)
    for r in list(range(Ox,Qx,2))+list(range(Vx+8,Vx+16,2)): e.i(f'v_mov_b64 {V(r,2)}, 0')
    e.i(f's_mov_b32 s79, {KVA+8192}\ns_mov_b32 s81, 0xff800000\ns_mov_b32 s82, 0xff800000\ns_mov_b32 s83, 0\ns_waitcnt vmcnt(4)')
    MF=lambda d,a,b,c: e.i(f'v_mfma_f32_32x32x16_bf16 {V(d,16)}, {V(a,4)}, {V(b,4)}, {V(c,16)}')
    QK=lambda j,b,k: MF(Sx+16*j,Kx+8*b+4*k,Qx+8*j+4*k,(Sx if k else Nx)+16*j)
    PV=lambda j,b,k: MF(Ox+16*j,Vx+8*b+4*k,Px+8*j+4*k,Ox+16*j)
    QK(0,0,0); QK(0,0,1); e.i('s_nop 7\ns_nop 3')
    e.lab('P3_L'); slow=[]
    for b in range(2):
        for j in range(3):
            s=Sx+16*j; jn,bn=(j+1)%3,b^(j==2); jp,bp=(j+2)%3,b^(j==0)
            if j: e.i('s_waitcnt vmcnt(4)')
            QK(jn,bn,0)
            e.i(f'v_max3_f32 v4, v{s}, v{s+1}, v{s+2}\nv_max3_f32 v5, v{s+3}, v{s+4}, v{s+5}')
            for r in range(6,16,4): e.i(f'v_max3_f32 v4, v4, v{s+r}, v{s+r+1}'+(f'\nv_max3_f32 v5, v5, v{s+r+2}, v{s+r+3}' if r<14 else ''))
            QK(jn,bn,1)
            e.i(f'v_max_f32 v4, v4, v5\nv_cmp_lt_f32 vcc, s81, v4\ns_cbranch_vccnz P3_S{b}{j}'); e.lab(f'P3_R{b}{j}'); slow.append((b,j))
            EX=lambda a,n:[e.i(f'v_exp_f32 v{s+r}, v{s+r}') for r in range(a,a+n)]
            EX(0,3); PV(jp,bp,0); EX(3,3)
            if j==1:
                for k in range(2): LD(e,Kx+8*b+4*k,'v0','s79',1024*k)
                e.i('s_add_u32 s79, s79, 4096')
            CV(e,Px+8*j,s,2); PV(jp,bp,1); EX(6,4)
            if j==0:
                for k in range(2): LD(e,Vx+8*bp+4*k,'v0','s80',2048+1024*k)
                e.i('s_add_u32 s80, s80, 4096')
            EX(10,6); CV(e,Px+8*j+2,s+4,6)
        if b==0: e.i('s_mov_b32 s81, 0x41000000\ns_mov_b32 s82, 0')
    e.i('s_add_u32 s83, s83, 1\ns_cmp_lt_u32 s83, 32\ns_cbranch_scc1 P3_L')
    PV(2,1,0); PV(2,1,1)
    e.i('v_and_b32 v2, 0x1f0, v0')
    for j in range(3):
        o=Ox+16*j; T=76+j
        e.i(f'''s_lshr_b32 s84, s{T}, 2
s_mul_i32 s84, s84, 5120
s_add_u32 s84, s84, {OA}
s_and_b32 s85, s{T}, 3
s_lshl_b32 s85, s85, 10
s_add_u32 s85, s85, s84
s_and_b32 s86, s{T}, 2
s_lshl_b32 s86, s86, 8
s_add_u32 s84, s84, s86
s_and_b32 s86, s{T}, 1
s_lshl_b32 s86, s86, 3
s_add_u32 s84, s84, s86
s_add_u32 s84, s84, 4096
v_rcp_f32 v4, v{o+12}''')
        for r in range(12): e.i(f'v_mul_f32 v{o+r}, v{o+r}, v4')
        CV(e,o,o,6)
        e.i(f'buffer_store_dwordx4 {V(o,4)}, v0, {WS}, s85 offen sc1\ns_mov_b32 exec_hi, 0\nbuffer_store_dwordx2 {V(o+4,2)}, v0, {WS}, s84 offen sc1\ns_mov_b32 exec_hi, -1')
    e.w0()
    for j in range(3): e.i(f's_lshl_b32 s84, s{76+j}, 2\ns_add_u32 s84, s84, {FL_P3}'); flagst(e,4,1,'s84')
    e.i('s_branch P3_END')
    for b,j in slow:
        e.lab(f'P3_S{b}{j}'); e.i('v_mov_b32 v5, v4\nv_permlane32_swap_b32 v4, v5\nv_max3_f32 v4, v4, v5, s82\nv_sub_f32 v5, 0, v4\nv_min_f32 v5, 0, v5\nv_exp_f32 v5, v5')
        for r in range(16): e.i(f'v_sub_f32 v{Sx+16*j+r}, v{Sx+16*j+r}, v4\nv_sub_f32 v{Nx+16*j+r}, v{Nx+16*j+r}, v4\nv_mul_f32 v{Ox+16*j+r}, v{Ox+16*j+r}, v5')
        e.i(f's_branch P3_R{b}{j}')
    e.lab('P3_END'); ts(e,3,4)
def t2(e):
    srd(e,12,'Wo'); srd(e,16,'wo'); srd(e,32,'out')
    lane(e,1)
    e.i(f'''s_mul_i32 s74, s3, 40960
s_lshl_b32 s75, s73, 6
s_mul_i32 s76, s3, 204800
s_add_u32 s76, s76, s75
s_mul_i32 s77, s3, 1310720
s_add_u32 s77, s77, s75
v_lshlrev_b32 v0, 4, v1
v_lshrrev_b32 v8, 2, v1
v_and_b32 v9, 3, v1
v_mul_u32_u24 v2, 1280, v8
v_lshl_add_u32 v2, v9, 4, v2
v_and_b32 v8, 3, v8
v_lshlrev_b32 v8, 6, v8
v_lshl_add_u32 v8, v9, 3, v8
v_bfe_u32 v9, v1, 4, 1
v_lshl_add_u32 v8, v9, 5, v8
v_add_u32 v8, s74, v8
v_lshrrev_b32 v9, 5, v1
v_lshl_add_u32 v3, v9, 8, v8
v_mul_u32_u24 v4, 2560, v9
v_add_u32 v4, v4, v8
v_and_b32 v8, 31, v1
v_mul_u32_u24 v5, 1280, v8
v_lshl_add_u32 v5, v9, 3, v5
v_lshlrev_b32 v6, 2, v8
v_and_b32 v8, 7, v1
v_bfe_u32 v9, v1, 3, 1
v_lshlrev_b32 v7, 2, v8
v_lshl_add_u32 v7, v9, 13, v7
s_barrier''')
    WA,AB,AA,RG=216,16,32,48
    un=[(W0,'v2','s77',None,20480,4,lambda sl,k=k:[(A(16*k+8*a+4*lp+2*z,2),'v3',sl*4096+(32*a+8*lp+16*z)*64) for a in range(2) for lp in range(2) for z in range(2)]) for k in range(16)]
    un.insert(7,(W1,'v2','s76',None,20480,10,lambda sl:[(V(WA+4*k+2*z,2),'v3' if k%5<4 else 'v4',28672+(80*(k//5)+(20*(k%5)+8*z if k%5<4 else 20*z+16))*64) for k in range(10) for z in range(2)]))
    stage(e,un,[('s74',4096*k) for k in range(8)])
    e.i(f's_barrier\ns_lshl_b32 s74, s3, 12\nv_add_u32 v3, s74, v0\ns_lshl_b32 s74, s3, 10\nv_add_u32 v4, s74, v0\ns_lshl_b32 s74, s3, 4\ns_add_u32 s75, s75, s74')
    ts(e,4,8)
    e.lab('T2_L')
    e.i(f'''s_lshl_b32 s76, s72, 2
s_add_u32 s76, s76, s3
s_mul_i32 s78, s76, 10240
s_add_u32 s78, s78, {OA}
s_lshl_b32 s77, s76, 16
s_add_u32 s77, s77, {O_}
s_lshl_b32 s76, s76, 5
s_add_u32 s76, s76, {FL_P3}
s_lshl_b32 s79, s72, 7
s_add_u32 s79, s79, {G_}
s_mul_i32 s80, s72, 40960
s_add_u32 s80, s80, s75''')
    poll(e,7,8,'s76','ne',1)
    e.i(f'buffer_load_dword v8, v6, {WS}, s79 offen sc1'); tk={}; NR=42
    def ld(k):
        so,kk=('s78',k) if k<10 else ('s77',k-10)
        tk[k]=LD(e,RG+4*(k%NR),'v0',so,(kk%4)*1024)
        if kk%4==3: e.i(f's_add_u32 {so}, {so}, 4096')
    for k in range(NR): ld(k)
    for k in range(74):
        e.wv(tk[k]); d,a=(AA,V(WA+4*k,4)) if k<10 else (AB,A(4*(k-10),4))
        e.i(f'v_mfma_f32_32x32x16_bf16 {V(d,16)}, {a}, {V(RG+4*(k%NR),4)}, {0 if k in (0,10) else V(d,16)}')
        if k and k-1+NR<74: ld(k-1+NR)
        if k==40: e.i('v_sub_f32 v9, 1.0, v8')
        if 40<k<57: e.i(f'v_mul_f32 v{AA+k-41}, v8, v{AA+k-41}')
    for g in range(4):
        for r in range(4*g,4*g+4): e.i(f'v_fmac_f32 v{AA+r}, v9, v{AB+r}')
        e.i(f'ds_write_b128 v3, {V(AA+4*g,4)} offset:{1024*g}')
    e.wl(); e.i('s_barrier')
    for w in range(4): e.i(f'ds_read_b128 {V(AB+4*w,4)}, v4 offset:{4096*w}')
    e.i('v_xor_b32 v3, 0x4000, v3\nv_xor_b32 v4, 0x4000, v4'); e.wl()
    for d,s in ((0,4),(2,6),(8,12),(10,14),(0,8),(2,10)): e.i(f'v_pk_add_f32 {V(AB+d,2)}, {V(AB+d,2)}, {V(AB+s,2)}')
    CV(e,10,AB,2); e.i(f'buffer_store_dwordx2 v[10:11], v5, {OUT}, s80 offen')
    if DBG: e.i('s_lshl_b32 s96, s72, 2\ns_add_u32 s96, s96, 64'); ts(e,'s96',9)
    e.i('s_add_u32 s72, s72, 7\ns_cmp_lt_u32 s72, 64\ns_cbranch_scc1 T2_L'); ts(e,5,8)
def t1(e):
    e.lab('T1'); lane(e,1)
    e.i(f'''s_lshr_b32 s72, s74, 3
s_and_b32 s73, s74, 7
s_lshl_b32 s73, s73, 2
s_add_u32 s73, s73, s3
v_lshlrev_b32 v0, 4, v1
s_lshr_b32 s75, s73, 1
s_add_u32 s75, s75, 32
s_sub_u32 s75, s75, s73
v_bfe_u32 v2, v1, 2, 1
v_mul_lo_u32 v2, v2, s75
v_and_b32 v3, 3, v1
v_lshl_add_u32 v2, v2, 2, v3
v_lshlrev_b32 v2, 2, v2
s_lshl_b32 s75, s73, 4''')
    poll(e,2,3,'s75','ne',16)
    e.i(f'v_and_b32 v2, 15, v1\nv_lshrrev_b32 v3, 4, v1\nv_lshlrev_b32 v4, 4, v2\nv_lshl_add_u32 v4, v3, 9, v4\nv_lshlrev_b32 v3, 2, v3\nv_sub_u32 v2, v2, v3\nv_mov_b32 v5, 0xff800000\ns_mov_b32 s94, 0x3e0293ee\ns_lshl_b32 s81, s73, 6\ns_add_u32 s81, s81, {FL_CH}')
    for i in range(4): e.i(f'v_cmp_le_i32 s[{84+2*i}:{85+2*i}], {i}, v2\nv_mov_b32 v{8+i}, 0x3f803f80')
    e.i('v_mov_b32 v2, 0\nv_mov_b32 v12, 0x3f003f00\nv_mov_b32 v13, 0x3f003f00')
    Qx,Kx,Vx,KM,VM,Sx,Px,Lx,Ox=16,48,80,112,128,144,168,180,192
    M32=lambda d,a,b,c=0: e.i(f'v_mfma_f32_16x16x32_bf16 {V(d,4)}, {V(a,4)}, {V(b,4)}, {V(c,4) if c else 0}')
    M16=lambda d,a,b,c=0: e.i(f'v_mfma_f32_16x16x16_bf16 {V(d,4)}, {V(a,2)}, {V(b,2)}, {V(c,4) if c else 0}')
    e.lab('T1_L')
    e.i(f's_lshl_b32 s75, s72, 5\ns_add_u32 s75, s75, s73\ns_lshl_b32 s80, s75, 2\ns_add_u32 s80, s80, {FL_T1}\ns_lshl_b32 s76, s75, 14\ns_add_u32 s76, s76, {KV}\ns_lshl_b32 s75, s75, 13\ns_add_u32 s77, s75, {Q_}\ns_add_u32 s78, s75, {KMVM}\ns_add_u32 s79, s75, {O_}')
    for w in range(4):
        for t in range(2): LD(e,Qx+8*w+4*t,'v0','s77',(w%2)*2048+t*1024); LD(e,Kx+8*w+4*t,'v0','s76',t*1024); LD(e,Vx+8*w+4*t,'v0','s76',2048+t*1024)
        e.i('s_add_u32 s76, s76, 4096')
        if w==1: e.i('s_add_u32 s77, s77, 4096')
    poll(e,2,3,'s81','ge','s72')
    for w in range(4):
        LD(e,KM+4*w,'v0','s78',(w%2)*2048); LD(e,VM+4*w,'v0','s78',(w%2)*2048+1024)
        if w==1: e.i('s_add_u32 s78, s78, 4096')
    for w in range(4):
        for qt,kt in ((0,0),(1,0),(1,1)): d=Sx+12*qt+4*kt; M32(d,Kx+8*w+4*kt,Qx+8*w+4*qt,d if w else 0)
    for d in (Sx,Sx+16):
        for i in range(4): e.i(f'v_cndmask_b32 v{d+i}, v5, v{d+i}, s[{84+2*i}:{85+2*i}]')
    e.wv()
    for w in range(4):
        for qt in range(2): d=Sx+12*qt+8; M32(d,KM+4*w,Qx+8*w+4*qt,d if w else 0)
    R=[[Sx+r for r in (0,1,2,3,8,9,10,11)],[Sx+12+r for r in range(12)]]
    for qt in range(2):
        x=6+8*qt; r=R[qt]; e.i(f'v_max_f32 v{x}, v{r[0]}, v{r[1]}')
        for z in range(2,len(r),2): e.i(f'v_max3_f32 v{x}, v{x}, v{r[z]}, v{r[z+1]}')
    for sw in (16,32):
        e.i(f'v_mov_b32 v7, v6\nv_mov_b32 v15, v14\nv_permlane{sw}_swap_b32 v6, v7\nv_permlane{sw}_swap_b32 v14, v15\nv_max_f32 v6, v6, v7\nv_max_f32 v14, v14, v15')
    e.i(f'v_mul_f32 v6, s94, v6\nv_mul_f32 v14, s94, v14\nv_mov_b64 {V(Px+2,2)}, 0')
    for qt in range(2):
        for r in R[qt]: e.i(f'v_fma_f32 v{r}, v{r}, s94, -v{6+8*qt}')
        for r in R[qt]: e.i(f'v_exp_f32 v{r}, v{r}')
    CV(e,Px,Sx,2); CV(e,Px+8,Sx+8,2); CV(e,Px+4,Sx+12,4); CV(e,Px+10,Sx+20,2)
    for qt in range(2): M32(Lx+4*qt,8,Px+4*qt)
    for qt in range(2): M16(Lx+4*qt,12,Px+8+2*qt,Lx+4*qt)
    def fin(w):
        for qt in range(2):
            d=Ox+16*w+8*qt
            for r in range(8): e.i(f'v_mul_f32 v{d+r}, v{d+r}, v{6+8*qt}')
            CV(e,d,d,4); e.i(f'buffer_store_dwordx4 {V(d,4)}, v4, {WS}, s79 offen offset:{(w%2)*2048+256*qt} sc1')
        if w==1: e.i('s_add_u32 s79, s79, 4096')
    for w in range(4):
        L=[(Ox+16*w+8*qt+4*t,qt,t) for qt in range(2) for t in range(2)]
        for d,qt,t in L: M32(d,Vx+8*w+4*t,Px+4*qt)
        for d,qt,t in L: M16(d,VM+4*w+2*t,Px+8+2*qt,d)
        if w: fin(w-1)
        else: e.i(f'v_rcp_f32 v6, v{Lx}\nv_rcp_f32 v14, v{Lx+4}')
    fin(3); e.w0(); flagst(e,3,1,'s80')
    if DBG: e.i('s_lshl_b32 s96, s72, 2\ns_add_u32 s96, s96, 64'); ts(e,'s96',3)
    e.i('s_add_u32 s72, s72, 4\ns_cmp_lt_u32 s72, 64\ns_cbranch_scc1 T1_L'); ts(e,6,3)
```

```python
import sys,os
sys.path.insert(0,os.path.dirname(__file__))
from common import *
import p01
N='gated_mix__grouped_kv_mqa__memory_aug_recurrent_mem_tr__prompt'
PH=os.environ.get('PH','all')
e=E(); p01.p0(e); p01.p1(e)
if PH!='p1':
    import rest; rest.workers(e,PH)
e.i('s_branch END'); e.lab('CHAIN')
if PH!='p1':
    import chain; chain.chain(e)
e.lab('END'); e.i('s_waitcnt vmcnt(0)\ns_endpgm')
ref=open(f'cdna_kernels/{N}.s.ref').read().split('\n')
i0=ref.index(N+'_kernel:'); i1=ref.index('s_endpgm')
hd=[('; @launch grid=(256,1,1) block=(256,1,1) lds=163840' if l.startswith('; @launch') else l) for l in ref[:i0+1]]
tl=[l.replace('vgpr 256','vgpr 512') for l in ref[i1+1:]]
out=sys.argv[1] if len(sys.argv)>1 else f'cdna_kernels/{N}.s'
open(out,'w').write('\n'.join(hd+e.L+tl))
print(len(e.L),'lines', sum(1 for l in e.L if 's_nop' in l),'nops')
```
